```python
import torch

def _softmax(x, axis=-1):
    return torch.softmax(x, dim=axis)
def _gelu(x):
    return torch.nn.functional.gelu(x, approximate="tanh")
def _silu(x):
    return torch.nn.functional.silu(x)
def _sigmoid(x):
    return torch.sigmoid(x)
def _layernorm(x, axis=-1, eps=1e-5):
    m = x.mean(dim=axis, keepdim=True)
    v = x.var(dim=axis, keepdim=True, unbiased=False)
    return (x - m) / torch.sqrt(v + eps)
def _scatter_add(tgt, idx, src, axis=0):
    return tgt.clone().index_add_(axis, idx, src)
def _segment_sum(src, seg, n):
    out = torch.zeros((n,) + src.shape[1:], dtype=src.dtype)
    return out.index_add_(0, seg, src)
def _pad(x, pw):
    flat = tuple(v for pair in reversed(pw) for v in pair)
    return torch.nn.functional.pad(x, flat)

kernel_name = 'sequential_preLN__spectral_fnet__dense_activation_relu__prompt'

def setup_inputs():

    _w = (lambda a: (lambda t: t.to(torch.bfloat16) if t.is_floating_point() else t)(torch.as_tensor(a)))
    def _A_setup():
        B, S, D = 1, 2048, 1024
        ns = torch.arange(S)[:, None] * torch.arange(S)[None, :]
        nd = torch.arange(D)[:, None] * torch.arange(D)[None, :]
        Ws_re = torch.cos(-2.0 * torch.pi * ns / S).to(float)
        Ws_im = torch.sin(-2.0 * torch.pi * ns / S).to(float)
        Wd_re = torch.cos(-2.0 * torch.pi * nd / D).to(float)
        Wd_im = torch.sin(-2.0 * torch.pi * nd / D).to(float)
        return {
            "x": _w((lambda *s: torch.randn(*s, dtype=torch.bfloat16) * 0.05)(B, S, D)),
            "dft_seq_re": _w(Ws_re),
            "dft_seq_im": _w(Ws_im),
            "dft_hid_re": _w(Wd_re),
            "dft_hid_im": _w(Wd_im),
        }
    _A_in = _A_setup()

    def _B_setup():
        B, S, D, Dff = 1, 2048, 1024, 3584
        return {
            "x": _w((lambda *s: torch.randn(*s, dtype=torch.bfloat16) * 0.05)(B, S, D)),
            "w1": _w((lambda *s: torch.randn(*s, dtype=torch.bfloat16) * 0.4)(D, Dff)),
            "w2": _w((lambda *s: torch.randn(*s, dtype=torch.bfloat16) * 0.4)(Dff, D)),
        }
    _B_in = _B_setup()

    return {
        "A_x": _A_in["x"],
        "A_dft_seq_re": _A_in["dft_seq_re"],
        "A_dft_seq_im": _A_in["dft_seq_im"],
        "A_dft_hid_re": _A_in["dft_hid_re"],
        "A_dft_hid_im": _A_in["dft_hid_im"],
        "B_x": _B_in["x"],
        "B_w1": _B_in["w1"],
        "B_w2": _B_in["w2"],
    }

def reference(A_x, A_dft_seq_re, A_dft_seq_im, A_dft_hid_re, A_dft_hid_im, B_x, B_w1, B_w2):
    def _A_ref(x, dft_seq_re, dft_seq_im, dft_hid_re, dft_hid_im):
        a = torch.einsum("bsd,ed->bse", x, dft_hid_re)
        b = torch.einsum("bsd,ed->bse", x, dft_hid_im)
        y = torch.einsum("ts,bse->bte", dft_seq_re, a) - torch.einsum("ts,bse->bte", dft_seq_im, b)
        return y

    def _B_ref(x, w1, w2):
        h = torch.einsum("bsd,df->bsf", x, w1)
        zero = torch.zeros_like(h)
        h = torch.maximum(h, zero)
        return torch.einsum("bsf,fd->bsd", h, w2)

    x = A_x
    h = x + _A_ref(_layernorm(x, axis=-1), A_dft_seq_re, A_dft_seq_im, A_dft_hid_re, A_dft_hid_im)
    h2 = h + _B_ref(_layernorm(h, axis=-1), B_w1, B_w2)
    return h2
```

```python
NAME = "sequential_preLN__spectral_fnet__dense_activation_relu__prompt"
FROW = 1152
FVAR = 528 * FROW
WS_F = 0
WS_AT = WS_F + 4 * FVAR
WS_H = 5 * 1024 * 1024
WS_ST = WS_H + 4 * 1024 * 1024
WS_CS = WS_ST + 256 * 1024
WS_H1 = 10 * 1024 * 1024
assert WS_AT + 4 * FVAR <= WS_H

class Asm:
    def __init__(self):
        self.l = []
    def __call__(self, s):
        for x in s.split("\n"):
            x = x.strip()
            if x:
                self.l.append(("" if x.endswith(":") else "  ") + x)
    def text(self):
        return "\n".join(self.l) + "\n"

def srd(a, d, ptr, off, size):
    if off:
        a(f"s_add_u32 s{d}, s{ptr}, {off}")
        a(f"s_addc_u32 s{d+1}, s{ptr+1}, 0")
    else:
        a(f"s_mov_b32 s{d}, s{ptr}")
        a(f"s_mov_b32 s{d+1}, s{ptr+1}")
    a(f"s_mov_b32 s{d+2}, {size}")
    a(f"s_mov_b32 s{d+3}, 0x20000")

def head(a, k):
    a.l.append(f".globl {k}\n.p2align 8\n.type {k},@function\n{k}:")

def desc(k, vgpr, accum, sgpr=96):
    return f""".amdhsa_kernel {k}
  .amdhsa_next_free_vgpr {vgpr}
  .amdhsa_next_free_sgpr {sgpr}
  .amdhsa_accum_offset {accum}
  .amdhsa_group_segment_fixed_size 0
  .amdhsa_kernarg_size 88
  .amdhsa_user_sgpr_count 2
  .amdhsa_user_sgpr_kernarg_segment_ptr 1
  .amdhsa_system_sgpr_workgroup_id_x 1
.end_amdhsa_kernel
"""

def wave_sum(a, v, tmp_s):
    for m in ("quad_perm:[1,0,3,2]", "quad_perm:[2,3,0,1]", "row_half_mirror", "row_mirror"):
        a("s_nop 1")
        a(f"v_add_f32_dpp v{v}, v{v}, v{v} {m} row_mask:0xf bank_mask:0xf")
    a("s_nop 1")
    for i in range(4):
        a(f"v_readlane_b32 s{tmp_s+i}, v{v}, {16*i}")
    a("s_nop 1")
    a(f"v_mov_b32 v{v}, s{tmp_s}")
    a(f"v_add_f32 v{v}, s{tmp_s+1}, v{v}")
    a(f"v_add_f32 v{v}, s{tmp_s+2}, v{v}")
    a(f"v_add_f32 v{v}, s{tmp_s+3}, v{v}")
```

```python
from common import *
def gen_gemm(a, k, which, opt=None):
    opt = opt or {}
    G1 = which == 1
    L = ("G1" if G1 else "G2") + opt.get("tag", "")
    NT = 224 if G1 else 64
    nfr = NT // 32
    NSUB = 1 if G1 else 2
    KT = 1024 if G1 else 3584
    NS = KT // (64 * NSUB)
    WSTR = 7168 if G1 else 2048
    HSTR = 2048 if G1 else 7168
    RB = NT * 2
    HB = NSUB * 16384
    WB = 64 * RB
    STG = HB + NSUB * WB
    NH = 4 * NSUB
    NWs = WB // 4096
    ND = NH + NWs * NSUB
    XTRA = 3 * STG
    U = 2 * NSUB
    head(a, k)
    a(f"""s_cmp_ge_u32 s2, 256
    s_cbranch_scc1 {L}_END
    s_load_dwordx2 s[4:5], s[0:1], {48 if G1 else 56}
    s_load_dwordx2 s[8:9], s[0:1], 80
    s_load_dwordx2 s[10:11], s[0:1], 64
    v_and_b32 v1, 63, v0
    v_lshrrev_b32 v2, 6, v0
    s_and_b32 s24, s2, 7
    v_readfirstlane_b32 s3, v2
    s_lshr_b32 s25, s2, 3""")
    if G1:
        a("""s_and_b32 s26, s24, 1
        s_lshl_b32 s26, s26, 3
        s_and_b32 s27, s25, 7
        s_add_u32 s26, s26, s27
        s_lshr_b32 s27, s24, 1
        s_lshl_b32 s27, s27, 2
        s_lshr_b32 s28, s25, 3
        s_add_u32 s27, s27, s28""")
    else:
        a("""s_and_b32 s26, s24, 3
        s_lshl_b32 s26, s26, 2
        s_and_b32 s27, s25, 3
        s_add_u32 s26, s26, s27
        s_lshr_b32 s27, s24, 2
        s_lshl_b32 s27, s27, 3
        s_lshr_b32 s28, s25, 2
        s_add_u32 s27, s27, s28""")
    a(f"""s_lshl_b32 s26, s26, 7
    s_mul_i32 s27, s27, {NT}
    s_waitcnt lgkmcnt(0)""")
    srd(a, 12, 4, 0, 1024 * 3584 * 2)
    if G1:
        srd(a, 16, 8, WS_H, 2048 * 2048)
        srd(a, 20, 8, WS_H1, 2048 * 7168)
        srd(a, 36, 8, WS_ST, 2048 * 88)
        srd(a, 40, 8, WS_CS, 16 * 14336)
    else:
        srd(a, 16, 8, WS_H1, 2048 * 7168)
        srd(a, 20, 10, 0, 2048 * 2048)
        srd(a, 36, 8, WS_H, 2048 * 2048)
    a(f"s_cmp_ge_u32 s3, 4\ns_cbranch_scc1 {L}_LOADER")
    a("""s_and_b32 s28, s3, 1
    s_lshr_b32 s29, s3, 1
    v_and_b32 v3, 15, v1
    v_lshrrev_b32 v4, 4, v1""")
    NT4 = 4 * nfr
    for i in range(4 * NT4):
        a(f"v_accvgpr_write_b32 a{i}, 0")
    a(f"""v_lshrrev_b32 v5, 1, v3
    v_xor_b32 v5, v5, v4
    v_lshlrev_b32 v5, 4, v5
    v_lshl_add_u32 v5, v3, 7, v5
    s_lshl_b32 s30, s28, 13
    v_add_u32 v8, s30, v5
    v_xor_b32 v9, 64, v8
    v_lshrrev_b32 v5, 2, v3
    v_and_b32 v6, 3, v3
    v_lshl_add_u32 v7, v4, 3, v5
    v_mul_u32_u24 v7, {RB}, v7
    v_lshl_add_u32 v7, v6, 3, v7
    v_add_u32 v7, {HB}, v7""")
    if G1:
        a(f"""s_mul_i32 s30, s29, 224
        v_and_b32 v5, 1, v4
        v_lshlrev_b32 v5, 5, v5
        v_add_u32 v7, s30, v7
        v_add_u32 v10, v7, v5
        v_sub_u32 v11, v7, v5
        s_cmp_eq_u32 s29, 1
        s_cbranch_scc0 {L}_NOSW
        v_mov_b32 v12, v10
        v_mov_b32 v10, v11
        v_mov_b32 v11, v12
        {L}_NOSW:""")
    else:
        a("""v_lshrrev_b32 v5, 3, v3
        v_and_b32 v12, 1, v4
        v_lshl_or_b32 v5, v12, 1, v5
        s_lshl_b32 s30, s29, 1
        v_xor_b32 v12, s30, v5
        v_lshl_add_u32 v10, v12, 5, v7
        v_xor_b32 v12, 1, v12
        v_lshl_add_u32 v11, v12, 5, v7""")
    if G1:
        a(f"""v_cmp_gt_u32 vcc, 128, v0
        s_and_saveexec_b64 s[44:45], vcc
        v_add_u32 v5, s26, v0
        v_mul_u32_u24 v5, 88, v5""")
        for j in range(11):
            a(f"buffer_load_dwordx2 v[{16+2*j}:{17+2*j}], v5, s[36:39], 0 offen offset:{8*j}")
        a(f"""s_mov_b64 exec, s[44:45]
        v_cmp_gt_u32 vcc, 224, v0
        s_and_saveexec_b64 s[44:45], vcc
        v_add_u32 v6, s27, v0
        v_lshlrev_b32 v6, 2, v6""")
        for j in range(16):
            a(f"s_mov_b32 s30, {14336*j}\nbuffer_load_dword v{40+j}, v6, s[40:43], s30 offen")
        a("s_waitcnt vmcnt(0)")
        for j in range(1, 16):
            a(f"v_add_f32 v40, v40, v{40+j}")
        a(f"""v_lshlrev_b32 v6, 2, v0
        v_add_u32 v6, {XTRA+1024}, v6
        ds_write_b32 v6, v40
        s_mov_b64 exec, s[44:45]
        v_cmp_gt_u32 vcc, 128, v0
        s_and_saveexec_b64 s[44:45], vcc
        s_waitcnt vmcnt(0)""")
        for j in range(1, 11):
            a(f"v_add_f32 v16, v16, v{16+2*j}\nv_add_f32 v17, v17, v{17+2*j}")
        a(f"""v_mul_f32 v16, 0x3a800000, v16
        v_mul_f32 v17, 0x3a800000, v17
        v_fma_f32 v17, -v16, v16, v17
        v_max_f32 v17, 0, v17
        v_add_f32 v17, 0x3727c5ac, v17
        v_rsq_f32 v17, v17
        v_lshlrev_b32 v6, 3, v0
        v_add_u32 v6, {XTRA}, v6
        ds_write_b64 v6, v[16:17]
        s_mov_b64 exec, s[44:45]""")
    else:
        a(f"""s_lshl_b32 s30, s28, 6
        s_add_u32 s30, s30, s26
        v_add_u32 v5, s30, v3
        v_lshlrev_b32 v5, 11, v5
        s_lshl_b32 s31, s29, 5
        s_add_u32 s31, s31, s27
        s_lshl_b32 s31, s31, 1
        v_lshl_add_u32 v13, v4, 3, v5
        v_add_u32 v13, s31, v13""")
        for ii in range(2):
            for jj in range(4):
                a(f"s_mov_b32 s30, {jj*16*2048}\nbuffer_load_dwordx2 v[{96+2*(4*ii+jj)}:{97+2*(4*ii+jj)}], v13, s[36:39], s30 offen offset:{32*ii}")
    FS = 16 + 4 * nfr
    FB = 16
    def fr_h(st, jj): return FB + st * FS + 4 * jj
    def fr_w(st, ii): return FB + st * FS + 16 + 4 * ii
    def reads(st, sub, ks, cur):
        r = []
        hs = [f"ds_read_b128 v[{fr_h(st,jj)}:{fr_h(st,jj)+3}], v{cur[ks]} offset:{sub*16384+jj*2048}" for jj in range(4)]
        ws = []
        for ii in range(nfr):
            for hh in range(2):
                off = sub * WB + (32 * ks + 4 * hh) * RB + (32 * ii if G1 else 0)
                q = fr_w(st, ii) + 2 * hh
                ws.append(f"ds_read_b64_tr_b16 v[{q}:{q+1}], v{cur[2+(ii&1)]} offset:{off}")
        return ws[:2] + hs + ws[2:]
    def mfmas(st):
        m = []
        for ii in range(nfr):
            for jj in range(4):
                t = 4 * (4 * ii + jj)
                m.append(f"v_mfma_f32_16x16x32_bf16 a[{t}:{t+3}], v[{fr_w(st,ii)}:{fr_w(st,ii)+3}], v[{fr_h(st,jj)}:{fr_h(st,jj)+3}], a[{t}:{t+3}]")
        return m
    def interleave(ms, rs, per):
        if opt.get("noread"): rs = []
        if opt.get("nomfma"): ms = ms[:len(rs)//per+1] and [("s_nop 0") for _ in range((len(rs)+per-1)//per)]
        i = 0
        for m in ms:
            a(m)
            for _ in range(per):
                if i < len(rs):
                    a(rs[i]); i += 1
        assert i == len(rs)
    per = 1 if G1 else 2
    cur = (8, 9, 10, 11)
    a("s_waitcnt lgkmcnt(0)\ns_barrier")
    for r in reads(0, 0, 0, cur):
        a(r)
    a(f"s_mov_b32 s32, 0\ns_mov_b32 s33, {NS-1}")
    def stage(last):
        for u in range(U):
            st = u & 1
            a("s_waitcnt lgkmcnt(0)")
            if u < U - 1:
                un = u + 1
                interleave(mfmas(st), reads(st ^ 1, un >> 1, un & 1, cur), per)
            elif not last:
                a("s_barrier")
                a(f"""s_add_u32 s34, s32, {STG}
                s_cmp_eq_u32 s34, {3*STG}
                s_cselect_b32 s34, 0, s34
                s_sub_u32 s35, s34, s32
                s_mov_b32 s32, s34""")
                for v in cur:
                    a(f"v_add_u32 v{v}, s35, v{v}")
                interleave(mfmas(st), reads(st ^ 1, 0, 0, cur), per)
            else:
                for m in mfmas(st):
                    a(m)
    a(f"{L}_LOOP:")
    stage(False)
    a(f"s_sub_u32 s33, s33, 1\ns_cmp_lg_u32 s33, 0\ns_cbranch_scc1 {L}_LOOP")
    stage(True)
    a("s_nop 7\ns_nop 1")
    if opt.get("noepi"):
        pass
    elif G1:
        a(f"""s_lshl_b32 s30, s28, 6
        v_add_u32 v5, s30, v3
        v_lshlrev_b32 v6, 3, v5
        v_add_u32 v6, {XTRA}, v6""")
        for jj in range(4):
            a(f"ds_read_b64 v[{16+2*jj}:{17+2*jj}], v6 offset:{128*jj}")
        a(f"""s_mul_i32 s31, s29, 448
        v_lshlrev_b32 v7, 4, v4
        v_add_u32 v7, s31, v7
        v_add_u32 v7, {XTRA+1024}, v7""")
        for ii in range(7):
            a(f"ds_read_b128 v[{24+4*ii}:{27+4*ii}], v7 offset:{64*ii}")
        a(f"""v_add_u32 v5, s26, v5
        v_mul_u32_u24 v5, 7168, v5
        s_mul_i32 s31, s29, 112
        s_add_u32 s31, s31, s27
        s_lshl_b32 s31, s31, 1
        v_lshl_add_u32 v5, v4, 3, v5
        v_add_u32 v5, s31, v5
        s_waitcnt lgkmcnt(0)""")
        for jj in range(4):
            a(f"v_mul_f32 v{16+2*jj}, v{16+2*jj}, v{17+2*jj}")
        n = 0
        for jj in range(4):
            a(f"s_mov_b32 s30, {jj*16*7168}")
            for ii in range(7):
                t = 4 * (4 * ii + jj)
                b = 56 + 8 * (n % 6); n += 1
                for r in range(4):
                    a(f"v_accvgpr_read_b32 v{b+r}, a{t+r}")
                for r in range(4):
                    a(f"v_mul_f32 v{b+r}, v{b+r}, v{17+2*jj}")
                    a(f"v_fma_f32 v{b+r}, -v{16+2*jj}, v{24+4*ii+r}, v{b+r}")
                    a(f"v_max_f32 v{b+r}, 0, v{b+r}")
                a(f"v_cvt_pk_bf16_f32 v{b+4}, v{b}, v{b+1}\nv_cvt_pk_bf16_f32 v{b+5}, v{b+2}, v{b+3}")
                if n > 5:
                    pass
                a(f"buffer_store_dwordx2 v[{b+4}:{b+5}], v5, s[20:23], s30 offen offset:{32*ii}")
    else:
        a("s_waitcnt vmcnt(0)")
        for ii in range(2):
            for jj in range(4):
                t = 4 * (4 * ii + jj)
                x = 96 + 2 * (4 * ii + jj)
                b = 16 + 8 * (4 * ii + jj)
                for r in range(4):
                    a(f"v_accvgpr_read_b32 v{b+r}, a{t+r}")
                a(f"""v_lshlrev_b32 v{b+4}, 16, v{x}
                v_and_b32 v{b+5}, 0xffff0000, v{x}
                v_lshlrev_b32 v{b+6}, 16, v{x+1}
                v_and_b32 v{b+7}, 0xffff0000, v{x+1}""")
                for r in range(4):
                    a(f"v_add_f32 v{b+r}, v{b+r}, v{b+4+r}")
                a(f"v_cvt_pk_bf16_f32 v{b+4}, v{b}, v{b+1}\nv_cvt_pk_bf16_f32 v{b+5}, v{b+2}, v{b+3}")
                a(f"s_mov_b32 s30, {jj*16*2048}\nbuffer_store_dwordx2 v[{b+4}:{b+5}], v13, s[20:23], s30 offen offset:{32*ii}")
    a("s_endpgm")
    a(f"{L}_LOADER:\ns_sub_u32 s3, s3, 4")
    a(f"""v_lshrrev_b32 v3, 3, v1
    v_and_b32 v4, 7, v1
    v_lshrrev_b32 v5, 4, v1
    s_lshl_b32 s28, s3, 5
    s_add_u32 s28, s28, s26""")
    for jq in range(4):
        a(f"""v_add_u32 v6, {4*(jq&1)}, v5
        v_xor_b32 v6, v6, v4
        v_add_u32 v7, {8*jq}, v3
        v_add_u32 v7, s28, v7
        v_mul_u32_u24 v7, {HSTR}, v7
        v_lshl_add_u32 v{8+jq}, v6, 4, v7""")
    CPR = RB // 16
    for q in range(NWs):
        a(f"s_mul_i32 s29, s3, {NWs*64}\ns_add_u32 s29, s29, {q*64}\nv_add_u32 v6, s29, v1")
        if G1:
            a(f"""v_mul_u32_u24 v7, 2341, v6
            v_lshrrev_b32 v7, 16, v7
            v_mul_u32_u24 v20, 28, v7
            v_sub_u32 v6, v6, v20
            v_bfe_u32 v20, v7, 3, 1""")
        else:
            a(f"""v_lshrrev_b32 v7, 3, v6
            v_and_b32 v6, 7, v6
            v_bfe_u32 v20, v7, 1, 1
            v_bfe_u32 v21, v7, 3, 1
            v_lshl_or_b32 v20, v21, 1, v20""")
        a(f"""v_lshlrev_b32 v20, 1, v20
        v_xor_b32 v6, v6, v20
        v_mul_u32_u24 v7, {WSTR}, v7
        v_lshl_add_u32 v7, v6, 4, v7
        s_lshl_b32 s29, s27, 1
        v_add_u32 v{12+q}, s29, v7""")
    a(f"""s_mov_b32 s40, 0
    s_mov_b32 s41, 0
    s_lshl_b32 s44, s3, 12
    s_mul_i32 s45, s3, {NWs*1024}
    s_add_u32 s45, s45, {HB}""")
    def issue():
        if opt.get("noload"):
            return
        for sub in range(NSUB):
            for jq in range(4):
                a(f"s_add_u32 m0, s42, s44" if (sub == 0 and jq == 0) else f"s_add_u32 m0, m0, {1024 if jq else 16384-3072}")
                if sub == 0:
                    a("s_nop 0\n" + f"buffer_load_dwordx4 v{8+jq}, s[16:19], s40 offen lds")
                else:
                    a(f"s_add_u32 s46, s40, {128*sub}\nbuffer_load_dwordx4 v{8+jq}, s[16:19], s46 offen lds")
        for sub in range(NSUB):
            for q in range(NWs):
                a(f"s_add_u32 m0, s42, s45" if (sub == 0 and q == 0) else f"s_add_u32 m0, m0, {1024 if q else WB-1024*(NWs-1)}")
                if sub == 0:
                    a("s_nop 0\n" + f"buffer_load_dwordx4 v{12+q}, s[12:15], s41 offen lds")
                else:
                    a(f"s_add_u32 s46, s41, {64*WSTR*sub}\nbuffer_load_dwordx4 v{12+q}, s[12:15], s46 offen lds")
        a(f"""s_add_u32 s40, s40, {128*NSUB}
        s_add_u32 s41, s41, {64*WSTR*NSUB}""")
    for s in range(3):
        a(f"s_mov_b32 s42, {s*STG}")
        issue()
    a(f"s_waitcnt vmcnt({2*ND})\ns_barrier")
    a(f"s_mov_b32 s42, 0\ns_mov_b32 s43, {NS-3}\n{L}_LLOOP:\ns_waitcnt vmcnt({ND})\ns_barrier")
    issue()
    a(f"""s_add_u32 s42, s42, {STG}
    s_cmp_eq_u32 s42, {3*STG}
    s_cselect_b32 s42, 0, s42
    s_sub_u32 s43, s43, 1
    s_cmp_lg_u32 s43, 0
    s_cbranch_scc1 {L}_LLOOP
    s_waitcnt vmcnt({ND})
    s_barrier
    s_waitcnt vmcnt(0)
    s_barrier
    {L}_END:
    s_endpgm""")
    lds = 3 * STG + (2048 if G1 else 0)
    return desc(k, 240 if G1 else 160, 128), lds
```

```python
import sys
sys.path.insert(0, 'gen')
from common import *
from k1 import gen_k1
from k23 import gen_k2, gen_k3
from gemm import gen_gemm
def build(path, nk=5, variants=()):
    a = Asm()
    d = []
    d.append(gen_k1(a, "ln_fold_kernel"))
    d.append(gen_k2(a, "dft_hid_kernel"))
    d.append(gen_k3(a, "dft_seq_kernel"))
    d4, l4 = gen_gemm(a, "ffn1_kernel", 1); d.append(d4)
    d5, l5 = gen_gemm(a, "ffn2_kernel", 2); d.append(d5)
    ref = open(f"cdna_kernels/{NAME}.s.ref").read().split("\n")
    hdr = [l for l in ref if l.startswith(";   offset") or l.startswith("; Kernarg")]
    launches = [("ln_fold_kernel", 640, 256, 16448), ("dft_hid_kernel", 242, 256, 18432), ("dft_seq_kernel", 242, 256, 46080),
                ("ffn1_kernel", 256, 512, l4), ("ffn2_kernel", 256, 512, l5)][:nk]
    for (which, tag, o) in variants:
        o = dict(o); o["tag"] = tag
        nm = f"g{which}{tag}_kernel"
        dd, ll = gen_gemm(a, nm, which, o); d.append(dd)
        launches.append((nm, 256, 512, ll))
    s = "\n".join(hdr) + "\n"
    for (k, g, b, l) in launches:
        s += f"; @launch kernel={k} grid=({g},1,1) block=({b},1,1) lds={l}\n"
    s += '.amdgcn_target "amdgcn-amd-amdhsa--gfx950"\n.text\n' + a.text()
    s += '.section .rodata,"a"\n' + "".join(".p2align 6\n" + x for x in d)
    open(path, "w").write(s)
if __name__ == "__main__":
    build(sys.argv[1] if len(sys.argv) > 1 else f"cdna_kernels/{NAME}.s")
```

```python
from common import *
LROW = 4112
def gen_k1(a, k):
    head(a, k)
    a("""s_cmp_ge_u32 s2, 640
    s_cbranch_scc1 K1_END
    s_load_dwordx2 s[4:5], s[0:1], 0
    s_load_dwordx2 s[6:7], s[0:1], 48
    s_load_dwordx2 s[8:9], s[0:1], 80
    v_and_b32 v1, 63, v0
    v_lshrrev_b32 v2, 6, v0
    s_nop 0
    v_readfirstlane_b32 s3, v2
    s_waitcnt lgkmcnt(0)""")
    a("s_cmp_ge_u32 s2, 528\ns_cbranch_scc1 K1_CS")
    srd(a, 12, 4, 0, 4194304)
    srd(a, 16, 8, WS_F, 4 * FVAR)
    srd(a, 20, 8, WS_AT, 4 * FVAR)
    a(f"""s_mul_i32 s24, s2, {FROW}
    s_add_u32 s24, s24, 1056
    v_mov_b32 v40, 0
    v_cmp_gt_u32 vcc, 96, v0
    s_and_saveexec_b64 s[26:27], vcc
    v_mul_u32_u24 v3, 43691, v0
    v_lshrrev_b32 v3, 20, v3
    v_mul_u32_u24 v4, 24, v3
    v_sub_u32 v4, v0, v4
    v_mul_u32_u24 v3, {FVAR}, v3
    v_lshl_add_u32 v3, v4, 2, v3
    buffer_store_dword v40, v3, s[20:23], s24 offen
    s_mov_b64 exec, s[26:27]
    s_mul_i32 s25, s2, {FROW}
    s_cmp_gt_u32 s2, 512
    s_cbranch_scc1 K1_ZROW""")
    a("""s_sub_u32 s28, 1024, s2
    s_add_u32 s29, 1024, s2
    s_sub_u32 s30, 2048, s2
    s_and_b32 s30, s30, 2047
    s_cmp_eq_u32 s3, 1
    s_cselect_b32 s31, s28, s2
    s_cmp_eq_u32 s3, 2
    s_cselect_b32 s31, s29, s31
    s_cmp_eq_u32 s3, 3
    s_cselect_b32 s31, s30, s31
    s_lshl_b32 s31, s31, 11
    v_lshlrev_b32 v3, 4, v1
    buffer_load_dwordx4 v[4:7], v3, s[12:15], s31 offen
    buffer_load_dwordx4 v[8:11], v3, s[12:15], s31 offen offset:1024
    s_waitcnt vmcnt(0)""")
    for i in range(8):
        a(f"v_lshlrev_b32 v{16+2*i}, 16, v{4+i}")
        a(f"v_and_b32 v{17+2*i}, 0xffff0000, v{4+i}")
    a("v_add_f32 v12, v16, v17")
    for i in range(2, 16):
        a(f"v_add_f32 v12, v12, v{16+i}")
    wave_sum(a, 12, 32)
    a("v_mul_f32 v12, 0x3a800000, v12")
    for i in range(16):
        a(f"v_sub_f32 v{16+i}, v{16+i}, v12")
    a("v_mul_f32 v13, v16, v16")
    for i in range(1, 16):
        a(f"v_fmac_f32 v13, v{16+i}, v{16+i}")
    wave_sum(a, 13, 32)
    a("""v_mov_b32 v14, 0x3727c5ac
    v_fmac_f32 v14, 0x3a800000, v13
    v_rsq_f32 v14, v14
    s_nop 0""")
    for i in range(16):
        a(f"v_mul_f32 v{16+i}, v{16+i}, v14")
    a(f"""s_mul_i32 s32, s3, {LROW}
    v_lshlrev_b32 v3, 5, v1
    v_add_u32 v3, s32, v3
    ds_write_b128 v3, v[16:19]
    ds_write_b128 v3, v[20:23] offset:16
    ds_write_b128 v3, v[24:27] offset:2048
    ds_write_b128 v3, v[28:31] offset:2064
    v_cmp_eq_u32 vcc, 0, v1
    s_and_saveexec_b64 s[26:27], vcc
    ds_write_b32 v3, v16 offset:4096
    s_mov_b64 exec, s[26:27]
    s_waitcnt lgkmcnt(0)
    s_barrier""")
    a("""v_lshlrev_b32 v3, 3, v0
    v_sub_u32 v4, 4092, v3""")
    for r in range(4):
        a(f"ds_read_b64 v[{8+4*r}:{9+4*r}], v3 offset:{r*LROW}")
        a(f"ds_read2_b32 v[{10+4*r}:{11+4*r}], v4 offset0:0 offset1:1" if r == 0 else "")
        if r:
            a(f"v_add_u32 v5, {r*LROW}, v4")
            a(f"ds_read2_b32 v[{10+4*r}:{11+4*r}], v5 offset0:0 offset1:1")
    a("v_mov_b32 v5, 2048")
    for r in range(4):
        a(f"ds_read_b32 v{24+r}, v5 offset:{r*LROW}")
    a("""s_cmp_eq_u32 s2, 0
    s_cselect_b32 s33, 0.5, 1.0
    s_cmp_eq_u32 s2, 512
    s_cselect_b32 s33, 0.5, s33
    v_mov_b32 v6, s33
    v_mul_f32 v7, 0.5, v6
    v_cmp_eq_u32 vcc, 0, v0
    s_nop 1
    v_cndmask_b32 v7, v6, v7, vcc
    s_waitcnt lgkmcnt(0)""")
    def rowcomb(x0, x1, x2, x3, o):
        a(f"v_add_f32 v28, v{x0}, v{x3}\nv_add_f32 v29, v{x1}, v{x2}\nv_sub_f32 v30, v{x0}, v{x3}\nv_sub_f32 v31, v{x1}, v{x2}")
        a(f"v_add_f32 v{o}, v28, v29\nv_sub_f32 v{o+1}, v28, v29\nv_sub_f32 v{o+2}, v30, v31\nv_add_f32 v{o+3}, v30, v31")
    rowcomb(8, 12, 16, 20, 32)
    rowcomb(9, 13, 17, 21, 36)
    rowcomb(10, 14, 18, 22, 40)
    rowcomb(11, 15, 19, 23, 44)
    rowcomb(24, 25, 26, 27, 48)
    for v in range(4):
        op = "v_add_f32" if v < 2 else "v_sub_f32"
        a(f"{op} v{32+v}, v{32+v}, v{44+v}\n{op} v{36+v}, v{36+v}, v{40+v}")
        a(f"v_mul_f32 v{32+v}, v{32+v}, v7\nv_mul_f32 v{36+v}, v{36+v}, v6")
        a(f"v_cvt_pk_bf16_f32 v{52+v}, v{32+v}, v{36+v}")
    a("v_lshlrev_b32 v3, 2, v0")
    for v in range(4):
        a(f"s_add_u32 s34, s25, {v*FVAR}")
        a(f"buffer_store_dword v{52+v}, v3, s[16:19], s34 offen")
    a("""v_cmp_gt_u32 vcc, 32, v0
    s_and_saveexec_b64 s[26:27], vcc
    v_cmp_eq_u32 vcc, 0, v0""")
    for v in range(4):
        if v < 2:
            a(f"v_mul_f32 v{48+v}, v{48+v}, v6\nv_cvt_pk_bf16_f32 v{56+v}, v{48+v}, 0")
            a(f"v_cndmask_b32 v{56+v}, 0, v{56+v}, vcc")
        else:
            a(f"v_mov_b32 v{56+v}, 0")
    for v in range(4):
        a(f"s_add_u32 s34, s25, {v*FVAR+1024}")
        a(f"buffer_store_dword v{56+v}, v3, s[16:19], s34 offen")
    a("s_endpgm")
    a("K1_ZROW:\nv_lshlrev_b32 v3, 2, v0\nv_cmp_gt_u32 vcc, 32, v0\ns_and_saveexec_b64 s[26:27], vcc")
    for v in range(4):
        a(f"s_add_u32 s34, s25, {v*FVAR+1024}")
        a(f"buffer_store_dword v40, v3, s[16:19], s34 offen")
    a("s_mov_b64 exec, s[26:27]")
    for v in range(4):
        a(f"s_add_u32 s34, s25, {v*FVAR}")
        a(f"buffer_store_dword v40, v3, s[16:19], s34 offen")
    a("s_endpgm")
    a("K1_CS:")
    srd(a, 12, 6, 0, 1024 * 3584 * 2)
    srd(a, 16, 8, WS_CS, 16 * 3584 * 4)
    a("""s_sub_u32 s24, s2, 528
    s_mul_i32 s25, s24, 9363
    s_lshr_b32 s25, s25, 16
    s_mul_i32 s26, s25, 7
    s_sub_u32 s26, s24, s26
    s_mul_i32 s27, s25, 458752
    s_lshl_b32 s28, s26, 10
    s_add_u32 s27, s27, s28
    v_lshlrev_b32 v3, 2, v0
    v_mov_b32 v4, 0
    v_mov_b32 v5, 0""")
    for half in range(2):
        for i in range(32):
            a(f"buffer_load_dword v{8+i}, v3, s[12:15], s27 offen")
            a("s_add_u32 s27, s27, 7168")
        for i in range(32):
            a(f"s_waitcnt vmcnt({31-i})")
            a(f"v_lshlrev_b32 v6, 16, v{8+i}\nv_and_b32 v7, 0xffff0000, v{8+i}")
            a("v_add_f32 v4, v4, v6\nv_add_f32 v5, v5, v7")
    a("""s_mul_i32 s27, s25, 14336
    s_lshl_b32 s28, s26, 11
    s_add_u32 s27, s27, s28
    v_lshlrev_b32 v3, 3, v0
    buffer_store_dwordx2 v[4:5], v3, s[16:19], s27 offen
    K1_END:
    s_endpgm""")
    return desc(k, 64, 64)
```

```python
from common import *
FR0 = 16
def core(a, srdA, srdB, extra_after_step=None):
    for s in range(9):
        for i in range(3):
            r = FR0 + 24 * s + 4 * i
            a(f"buffer_load_dwordx4 v[{r}:{r+3}], v{10+i}, s[{srdA}:{srdA+3}], 0 offen offset:{64*s}")
        for j in range(3):
            r = FR0 + 24 * s + 12 + 4 * j
            a(f"buffer_load_dwordx4 v[{r}:{r+3}], v{13+j}, s[{srdB}:{srdB+3}], 0 offen offset:{64*s}")
    for i in range(36):
        a(f"v_accvgpr_write_b32 a{i}, 0")
    extra = 0
    for s in range(9):
        a(f"s_waitcnt vmcnt({6*(8-s)+extra})")
        for i in range(3):
            for j in range(3):
                ra = FR0 + 24 * s + 4 * i
                rb = FR0 + 24 * s + 12 + 4 * j
                t = 4 * (3 * i + j)
                a(f"v_mfma_f32_16x16x32_bf16 a[{t}:{t+3}], v[{ra}:{ra+3}], v[{rb}:{rb+3}], a[{t}:{t+3}]")
        if extra_after_step and s == extra_after_step[0]:
            extra = extra_after_step[1]()
    a("s_nop 7\ns_nop 1")

def tile_ids(a):
    a("""s_and_b32 s24, s2, 1
    s_lshr_b32 s27, s2, 1
    s_mul_i32 s25, s27, 5958
    s_lshr_b32 s25, s25, 16
    s_mul_i32 s26, s25, 11
    s_sub_u32 s26, s27, s26
    v_and_b32 v1, 63, v0
    v_lshrrev_b32 v2, 6, v0
    s_nop 0
    v_readfirstlane_b32 s3, v2
    v_and_b32 v3, 15, v1
    v_lshrrev_b32 v4, 4, v1
    s_nop 1
    s_and_b32 s28, s3, 1
    s_lshr_b32 s29, s3, 1""")

def gen_k2(a, k):
    head(a, k)
    a("""s_cmp_ge_u32 s2, 242
    s_cbranch_scc1 K2_END
    s_load_dwordx2 s[4:5], s[0:1], 24
    s_load_dwordx2 s[6:7], s[0:1], 32
    s_load_dwordx2 s[8:9], s[0:1], 80""")
    tile_ids(a)
    a("s_waitcnt lgkmcnt(0)")
    a("s_cmp_eq_u32 s24, 0\ns_cselect_b32 s4, s4, s6\ns_cselect_b32 s5, s5, s7")
    srd(a, 12, 8, WS_F, 4 * FVAR)
    srd(a, 16, 4, 0, 1024 * 2048)
    srd(a, 20, 8, WS_AT, 4 * FVAR)
    a(f"""s_lshl_b32 s30, s24, 1
    s_add_u32 s30, s30, s28
    s_mul_i32 s31, s30, {FVAR}
    s_mul_i32 s32, s25, {48*FROW}
    s_add_u32 s32, s32, s31
    s_mul_i32 s33, s29, 576
    s_add_u32 s32, s32, s33
    v_mul_u32_u24 v10, {FROW}, v3
    v_lshl_add_u32 v10, v4, 4, v10
    v_add_u32 v10, s32, v10
    v_add_u32 v11, {16*FROW}, v10
    v_add_u32 v12, {32*FROW}, v10
    s_mul_i32 s34, s26, {48*2048}
    s_add_u32 s34, s34, s33
    v_lshlrev_b32 v13, 11, v3
    v_lshl_add_u32 v13, v4, 4, v13
    v_add_u32 v13, s34, v13
    v_add_u32 v14, {16*2048}, v13
    v_add_u32 v15, {32*2048}, v13""")
    core(a, 12, 16)
    a("""s_mul_i32 s35, s28, 9216
    v_lshlrev_b32 v5, 4, v1
    v_add_u32 v5, s35, v5""")
    for i in range(36):
        a(f"v_accvgpr_read_b32 v{16+i}, a{i}")
    a("s_cmp_eq_u32 s29, 0\ns_cbranch_scc1 K2_RD")
    for t in range(9):
        a(f"ds_write_b128 v5, v[{16+4*t}:{19+4*t}] offset:{1024*t}")
    a("s_waitcnt lgkmcnt(0)\ns_barrier\ns_endpgm\nK2_RD:\ns_barrier")
    for t in range(9):
        a(f"ds_read_b128 v[{56+4*t}:{59+4*t}], v5 offset:{1024*t}")
    a(f"""s_mul_i32 s34, s26, {48*FROW}
    s_add_u32 s34, s34, s31
    s_mul_i32 s35, s25, 96
    s_add_u32 s34, s34, s35
    v_mul_u32_u24 v6, {FROW}, v3
    v_lshl_add_u32 v6, v4, 3, v6
    v_add_u32 v6, s34, v6
    v_add_u32 v7, {16*FROW}, v6
    v_add_u32 v8, {32*FROW}, v6
    s_waitcnt lgkmcnt(0)""")
    for ii in range(3):
        for jj in range(3):
            t = 3 * ii + jj
            for r in range(4):
                a(f"v_add_f32 v{16+4*t+r}, v{16+4*t+r}, v{56+4*t+r}")
            a(f"v_cvt_pk_bf16_f32 v{100+2*t}, v{16+4*t}, v{17+4*t}")
            a(f"v_cvt_pk_bf16_f32 v{101+2*t}, v{18+4*t}, v{19+4*t}")
            a(f"buffer_store_dwordx2 v[{100+2*t}:{101+2*t}], v{6+jj}, s[20:23], 0 offen offset:{32*ii}")
    a("K2_END:\ns_endpgm")
    return desc(k, 296, 256)

def gen_k3(a, k):
    head(a, k)
    a("""s_cmp_ge_u32 s2, 242
    s_cbranch_scc1 K3_END
    s_load_dwordx2 s[4:5], s[0:1], 8
    s_load_dwordx2 s[6:7], s[0:1], 16
    s_load_dwordx2 s[8:9], s[0:1], 80
    s_load_dwordx2 s[10:11], s[0:1], 0""")
    tile_ids(a)
    a("s_waitcnt lgkmcnt(0)")
    a("s_cmp_eq_u32 s28, 0\ns_cselect_b32 s4, s4, s6\ns_cselect_b32 s5, s5, s7")
    srd(a, 12, 8, WS_AT, 4 * FVAR)
    srd(a, 16, 4, 0, 2048 * 4096)
    srd(a, 20, 8, WS_H, 2048 * 2048)
    srd(a, 36, 10, 0, 2048 * 2048)
    srd(a, 40, 8, WS_ST, 2048 * 88)
    a(f"""s_lshl_b32 s30, s28, 1
    s_add_u32 s30, s30, s24
    s_mul_i32 s31, s30, {FVAR}
    s_mul_i32 s32, s26, {48*FROW}
    s_add_u32 s32, s32, s31
    s_mul_i32 s33, s29, 576
    s_add_u32 s32, s32, s33
    v_mul_u32_u24 v10, {FROW}, v3
    v_lshl_add_u32 v10, v4, 4, v10
    v_add_u32 v10, s32, v10
    v_add_u32 v11, {16*FROW}, v10
    v_add_u32 v12, {32*FROW}, v10
    s_mul_i32 s34, s25, {48*8192}
    s_lshl_b32 s35, s24, 12
    s_add_u32 s34, s34, s35
    s_add_u32 s34, s34, s33
    v_lshlrev_b32 v13, 13, v3
    v_lshl_add_u32 v13, v4, 4, v13
    v_add_u32 v13, s34, v13
    v_add_u32 v14, {16*8192}, v13
    v_add_u32 v15, {32*8192}, v13""")
    for it in range(3):
        b = 44 + 4 * it
        a(f"""s_add_u32 s{b+3}, s3, {4*it}
        s_mul_i32 s{b}, s{b+3}, 43
        s_lshr_b32 s{b}, s{b}, 7
        s_mul_i32 s{b+1}, s{b}, 3
        s_sub_u32 s{b+1}, s{b+3}, s{b+1}
        s_lshl_b32 s{b+2}, s{b}, 5
        s_mul_i32 s56, s{b+1}, 1536
        s_add_u32 s{b+2}, s{b+2}, s56
        s_lshl_b32 s{b}, s{b}, 4
        s_mul_i32 s56, s26, 48
        s_add_u32 s{b}, s{b}, s56
        s_lshl_b32 s{b+1}, s{b+1}, 4
        s_mul_i32 s56, s25, 48
        s_add_u32 s{b+1}, s{b+1}, s56
        s_lshl_b32 s{b+1}, s{b+1}, 1
        s_add_u32 s{b+1}, s{b+1}, s24""")
    XR = 232
    a("s_movk_i32 s72, 1024\ns_movk_i32 s73, 1023\ns_movk_i32 s74, 512\ns_movk_i32 s75, 508")
    def xloads():
        n = 0
        for it in range(3):
            b = 44 + 4 * it
            a(f"""v_lshl_add_u32 v5, v4, 2, s{b}
            v_lshl_add_u32 v6, v3, 1, s{b+1}
            v_lshlrev_b32 v7, 11, v6
            v_lshl_add_u32 v8, v5, 1, v7
            v_sub_u32 v9, 2042, v8
            v_lshl_add_u32 v9, v7, 1, v9
            buffer_load_dwordx2 v[{XR+8*it}:{XR+8*it+1}], v8, s[36:39], 0 offen
            buffer_load_dwordx2 v[{XR+8*it+2}:{XR+8*it+3}], v9, s[36:39], 0 offen
            v_sub_u32 v7, 0x400000, v7
            v_lshl_add_u32 v8, v5, 1, v7
            v_lshlrev_b32 v9, 1, v5
            v_sub_u32 v9, 2042, v9
            v_add_u32 v9, v9, v7
            buffer_load_dwordx2 v[{XR+8*it+4}:{XR+8*it+5}], v8, s[36:39], 0 offen
            buffer_load_dwordx2 v[{XR+8*it+6}:{XR+8*it+7}], v9, s[36:39], 0 offen""")
            n += 4
        return n
    core(a, 12, 16, (2, xloads))
    a("""s_mul_i32 s35, s3, 9216
    v_lshlrev_b32 v5, 4, v1
    v_add_u32 v6, s35, v5""")
    for i in range(36):
        a(f"v_accvgpr_read_b32 v{16+i}, a{i}")
    for t in range(9):
        a(f"ds_write_b128 v6, v[{16+4*t}:{19+4*t}] offset:{1024*t}")
    a("s_waitcnt vmcnt(0) lgkmcnt(0)\ns_barrier")
    SL = 36864
    for it in range(3):
        b = 44 + 4 * it
        X = XR + 8 * it
        if it == 2:
            a("s_cmp_gt_u32 s3, 0\ns_cbranch_scc1 K3_SYNC")
        a(f"s_lshl_b32 s56, s{b+3}, 10\nv_add_u32 v6, s56, v5")
        for w in range(4):
            a(f"ds_read_b128 v[{16+4*w}:{19+4*w}], v6 offset:{9216*w}")
        a(f"""v_lshl_add_u32 v7, v4, 2, s{b}
        v_lshl_add_u32 v8, v3, 1, s{b+1}
        s_waitcnt lgkmcnt(0)""")
        for r in range(4):
            a(f"v_add_f32 v{16+r}, v{16+r}, v{24+r}\nv_add_f32 v{20+r}, v{20+r}, v{28+r}")
            a(f"v_sub_f32 v{32+r}, v{16+r}, v{20+r}\nv_add_f32 v{36+r}, v{16+r}, v{20+r}")
        for q, (ys, rev) in enumerate(((32, 0), (36, 1), (36, 0), (32, 1))):
            o = 40 + 4 * q
            for r in range(4):
                src = X + 2 * q + (r >> 1)
                if r & 1:
                    a(f"v_and_b32 v{o+r}, 0xffff0000, v{src}")
                else:
                    a(f"v_lshlrev_b32 v{o+r}, 16, v{src}")
                a(f"v_add_f32 v{o+r}, v{o+r}, v{ys + (3-r if rev else r)}")
            a(f"v_cvt_pk_bf16_f32 v{56+2*q}, v{o}, v{o+1}\nv_cvt_pk_bf16_f32 v{57+2*q}, v{o+2}, v{o+3}")
        for q in range(4):
            o = 40 + 4 * q
            a(f"v_lshlrev_b32 v{o}, 16, v{56+2*q}\nv_and_b32 v{o+1}, 0xffff0000, v{56+2*q}")
            a(f"v_lshlrev_b32 v{o+2}, 16, v{57+2*q}\nv_and_b32 v{o+3}, 0xffff0000, v{57+2*q}")
        a("""v_cmp_ge_u32 vcc, 512, v7
        v_cndmask_b32 v64, 0, 1.0, vcc
        v_cmp_ge_u32 vcc, 508, v7
        v_cndmask_b32 v65, 0, 1.0, vcc
        v_cmp_lt_u32 vcc, 0, v7
        v_cndmask_b32 v66, 0, v65, vcc""".replace("v_cndmask", "s_nop 1\nv_cndmask"))
        for (qd, qm, so) in ((0, 1, 64 + 4), (2, 3, 64 + 6)):
            d, m = 40 + 4 * qd, 40 + 4 * qm
            a(f"v_mul_f32 v{d}, v{d}, v64")
            for r in (1, 2, 3):
                a(f"v_mul_f32 v{d+r}, v{d+r}, v65")
            for r in (0, 1, 2):
                a(f"v_mul_f32 v{m+r}, v{m+r}, v65")
            a(f"v_mul_f32 v{m+3}, v{m+3}, v66")
            a(f"v_add_f32 v{so}, v{d}, v{d+1}\nv_mul_f32 v{so+1}, v{d}, v{d}\nv_fmac_f32 v{so+1}, v{d+1}, v{d+1}")
            for z in (d + 2, d + 3, m, m + 1, m + 2, m + 3):
                a(f"v_add_f32 v{so}, v{so}, v{z}\nv_fmac_f32 v{so+1}, v{z}, v{z}")
        a(f"""v_mul_u32_u24 v72, 96, v3
        v_lshl_add_u32 v72, v4, 3, v72
        s_add_u32 s56, s{b+2}, {SL}
        v_add_u32 v72, s56, v72
        ds_write_b64 v72, v[68:69]
        ds_write_b64 v72, v[70:71] offset:4608""")
        a(f"""v_lshlrev_b32 v73, 11, v8
        v_lshlrev_b32 v74, 1, v7
        v_add_u32 v75, v73, v74
        v_sub_u32 v76, 2042, v74
        v_add_u32 v77, v73, v76
        v_sub_u32 v73, 0x400000, v73
        v_add_u32 v78, v73, v74
        v_add_u32 v79, v73, v76
        v_cmp_ge_u32 s[58:59], s72, v8
        v_cmp_ge_u32 s[60:61], s73, v8
        v_cmp_lt_u32 s[62:63], 0, v8
        s_and_b64 s[60:61], s[60:61], s[62:63]
        v_cmp_ge_u32 s[62:63], s74, v7
        v_cmp_ge_u32 s[64:65], s75, v7
        v_cmp_lt_u32 s[66:67], 0, v7
        s_and_b64 s[66:67], s[66:67], s[64:65]
        v_cmp_eq_u32 s[68:69], 0, v7
        s_mov_b64 s[70:71], exec
        s_and_b64 exec, s[58:59], s[62:63]
        buffer_store_dwordx2 v[56:57], v75, s[20:23], 0 offen
        s_and_b64 exec, s[58:59], s[66:67]
        buffer_store_dwordx2 v[58:59], v77, s[20:23], 0 offen
        s_and_b64 exec, s[60:61], s[62:63]
        buffer_store_dwordx2 v[60:61], v78, s[20:23], 0 offen
        s_and_b64 exec, s[60:61], s[66:67]
        buffer_store_dwordx2 v[62:63], v79, s[20:23], 0 offen
        s_and_b64 exec, s[58:59], s[68:69]
        buffer_store_dword v58, v77, s[20:23], 0 offen
        buffer_store_short v59, v77, s[20:23], 0 offen offset:4
        s_and_b64 exec, s[60:61], s[68:69]
        buffer_store_dword v62, v79, s[20:23], 0 offen
        buffer_store_short v63, v79, s[20:23], 0 offen offset:4
        s_mov_b64 exec, s[70:71]""")
    a("K3_SYNC:\ns_waitcnt lgkmcnt(0)\ns_barrier")
    a(f"""v_cmp_gt_u32 vcc, 96, v0
    s_and_saveexec_b64 s[70:71], vcc
    s_cbranch_execz K3_END
    v_mul_u32_u24 v5, 96, v0
    v_add_u32 v5, {SL}, v5""")
    for i in range(6):
        a(f"ds_read_b128 v[{16+4*i}:{19+4*i}], v5 offset:{16*i}")
    a(f"""v_cmp_le_u32 vcc, 48, v0
    v_subrev_u32 v6, 48, v0
    s_mul_i32 s56, s25, 96
    s_add_u32 s56, s56, s24
    v_cndmask_b32 v6, v0, v6, vcc
    v_lshl_add_u32 v6, v6, 1, s56
    v_sub_u32 v7, 2048, v6
    v_cndmask_b32 v8, v6, v7, vcc
    v_mul_u32_u24 v8, 88, v8
    s_lshl_b32 s57, s26, 3
    v_add_u32 v8, s57, v8
    v_cmp_ge_u32 s[58:59], s72, v6
    v_cmp_ge_u32 s[60:61], s73, v6
    v_cmp_lt_u32 s[62:63], 0, v6
    s_and_b64 s[60:61], s[60:61], s[62:63]
    s_and_b64 s[60:61], s[60:61], vcc
    s_andn2_b64 s[58:59], s[58:59], vcc
    s_or_b64 s[58:59], s[58:59], s[60:61]
    s_waitcnt lgkmcnt(0)""")
    for i in range(1, 12):
        a(f"v_add_f32 v16, v16, v{16+2*i}\nv_add_f32 v17, v17, v{17+2*i}")
    a("""s_and_b64 exec, exec, s[58:59]
    buffer_store_dwordx2 v[16:17], v8, s[40:43], 0 offen
    K3_END:
    s_endpgm""")
    return desc(k, 296, 256)
```

```python
import sys
sys.path.insert(0, 'gen')
from gen import build
V = []
for w in (1, 2):
    V += [(w, "noload", {"noload": 1}), (w, "nomfma", {"nomfma": 1}), (w, "noread", {"noread": 1}), (w, "noepi", {"noepi": 1}),
          (w, "onlyload", {"nomfma": 1, "noread": 1, "noepi": 1}), (w, "onlymfma", {"noload": 1, "noread": 1, "noepi": 1}),
          (w, "noloadepi", {"noload": 1, "noepi": 1})]
build("var.s", 5, V)
```
